```python
import torch

def _softmax(x, axis=-1):
    return torch.softmax(x, dim=axis)

def _gelu(x):
    return torch.nn.functional.gelu(x, approximate='tanh')

def _silu(x):
    return torch.nn.functional.silu(x)

def _sigmoid(x):
    return torch.sigmoid(x)

def _layernorm(x, axis=-1, eps=1e-05):
    m = x.mean(dim=axis, keepdim=True)
    v = x.var(dim=axis, keepdim=True, unbiased=False)
    return (x - m) / torch.sqrt(v + eps)

def _scatter_add(tgt, idx, src, axis=0):
    return tgt.clone().index_add_(axis, idx, src)

def _segment_sum(src, seg, n):
    out = torch.zeros((n,) + src.shape[1:], dtype=src.dtype)
    return out.index_add_(0, seg, src)

def _pad(x, pw):
    flat = tuple((v for pair in reversed(pw) for v in pair))
    return torch.nn.functional.pad(x, flat)
kernel_name = 'adaLN_cond__softmax_full_mha__dense_activation_silu__prompt'

def setup_inputs():

    _w = lambda a: (lambda t: t.to(torch.bfloat16) if t.is_floating_point() else t)(torch.as_tensor(a))

    def _A_setup():
        B, S, D = (1, 2048, 576)
        return {'x': _w((lambda *s: torch.randn(*s, dtype=torch.bfloat16) * 0.05)(B, S, D)), 'wqkv': _w((lambda *s: torch.randn(*s, dtype=torch.bfloat16) * 0.05)(D, 3 * D)), 'wo': _w((lambda *s: torch.randn(*s, dtype=torch.bfloat16) * 0.05)(D, D))}
    _A_in = _A_setup()

    def _B_setup():
        B, S, D, F = (1, 2048, 576, 4608)
        return {'x': _w((lambda *s: torch.randn(*s, dtype=torch.bfloat16) * 0.05)(B, S, D)), 'w1': _w((lambda *s: torch.randn(*s, dtype=torch.bfloat16) * 3.2)(D, F) * D ** (-0.5)), 'w2': _w((lambda *s: torch.randn(*s, dtype=torch.bfloat16) * 0.4)(F, D) * F ** (-0.5))}
    _B_in = _B_setup()
    return {'A_x': _A_in['x'], 'A_wqkv': _A_in['wqkv'], 'A_wo': _A_in['wo'], 'B_x': _B_in['x'], 'B_w1': _B_in['w1'], 'B_w2': _B_in['w2'], 'c': _w((lambda *s: torch.randn(*s, dtype=torch.bfloat16) * 0.1)(1, 576) * 8.0), 'w_mod': _w((lambda *s: torch.randn(*s, dtype=torch.bfloat16) * 0.1)(576, 6 * 576) * 576 ** (-0.5) * 8.0)}

def reference(A_x, A_wqkv, A_wo, B_x, B_w1, B_w2, c, w_mod):

    def _A_ref(x, wqkv, wo):
        B, S, D = x.shape
        H = 32
        Dh = D // H
        qkv = (lambda x, *d: x.permute(*d))((x @ wqkv).reshape(B, S, 3, H, Dh), 2, 0, 3, 1, 4)
        q, k, v = (qkv[0], qkv[1], qkv[2])
        scale = Dh ** (-0.5)
        scores = torch.einsum('bhqd,bhkd->bhqk', q, k) * scale
        p = _softmax(scores, axis=-1)
        o = torch.einsum('bhqk,bhkd->bhqd', p, v)
        return (lambda x, *d: x.permute(*d))(o, 0, 2, 1, 3).reshape(B, S, D) @ wo

    def _B_ref(x, w1, w2):
        h = torch.einsum('bsd,df->bsf', x, w1)
        h = _silu(h)
        out = torch.einsum('bsf,fd->bsd', h, w2)
        return out
    x = A_x
    mod = (_silu(c) @ w_mod).reshape(c.shape[0], 6, 1, -1)
    sa, ca, ga, sb, cb, gb = (mod[:, 0].clone(), mod[:, 1].clone(), mod[:, 2].clone(), mod[:, 3].clone(), mod[:, 4].clone(), mod[:, 5].clone())
    h = _layernorm(x, axis=-1) * (1 + ca) + sa
    x = x + ga * _A_ref(h, A_wqkv, A_wo)
    h = _layernorm(x, axis=-1) * (1 + cb) + sb
    x = x + gb * _B_ref(h, B_w1, B_w2)
    return x
```

```python
import re

TRANS = ("v_exp_f32","v_log_f32","v_rcp_f32","v_rsq_f32","v_sqrt_f32","v_sin_f32","v_cos_f32","v_exp_f16","v_rcp_f16","v_rcp_iflag_f32")
REG_RE = re.compile(r"^(-|\|)?(abs\()?([vas])(\d+|\[(\d+):(\d+)\])\)?\|?$")

def regs_of(tok):
    tok = tok.strip()
    if tok in ("vcc",): return {"vcc"}
    if tok in ("vcc_lo","vcc_hi"): return {"vcc"}
    if tok in ("exec","exec_lo","exec_hi"): return {"exec"}
    if tok == "m0": return {"m0"}
    m = REG_RE.match(tok)
    if not m: return set()
    k = m.group(3)
    if m.group(5) is not None:
        return {"%s%d"%(k,i) for i in range(int(m.group(5)), int(m.group(6))+1)}
    return {"%s%s"%(k,m.group(4))}

def split_ops(rest):
    out=[]; depth=0; cur=""
    for ch in rest:
        if ch in "[(": depth+=1
        if ch in "])": depth-=1
        if ch=="," and depth==0:
            out.append(cur.strip()); cur=""
        else: cur+=ch
    if cur.strip(): out.append(cur.strip())
    return out

def mfma_passes(mn):
    if "32x32x4_2b" in mn or "32x32x1_2b" in mn: return 16
    if "16x16x4_4b" in mn: return 8
    if "4x4x4" in mn: return 2
    if "32x32x16" in mn or "32x32x8" in mn: return 8
    if "16x16x32" in mn or "16x16x16" in mn: return 4
    raise ValueError(mn)

class Ins:
    __slots__=("text","mn","kind","wr","rd","A","B","C","passes","dpp","states","wide_data","sdwa_dst","label","target","lds_dma","lanesel")
    def __init__(self, text):
        self.text=text
        t = text.split(";")[0].strip()
        self.label=None; self.target=None
        self.wr=set(); self.rd=set(); self.A=self.B=self.C=set(); self.passes=0; self.dpp=False
        self.states=1; self.wide_data=set(); self.sdwa_dst=False; self.lds_dma=False; self.lanesel=set()
        if not t or t.startswith("."):
            self.kind="none"; self.mn=""; self.states=0; return
        if t.endswith(":"):
            self.kind="label"; self.label=t[:-1]; self.mn=""; self.states=0; return
        parts = t.split(None,1)
        mn = parts[0]; self.mn=mn
        rest = parts[1] if len(parts)>1 else ""
        ops = split_ops(rest)
        mods=""
        if ops:
            lp = ops[-1].split(None,1)
            ops[-1]=lp[0]
            if len(lp)>1: mods=lp[1]
        R = lambda i: regs_of(ops[i]) if i < len(ops) else set()
        if mn.startswith("v_mfma"):
            self.kind="mfma"; self.wr=R(0); self.A=R(1); self.B=R(2); self.C=R(3); self.rd=self.A|self.B|self.C
            self.passes=mfma_passes(mn)
        elif mn.startswith("v_"):
            base = re.sub(r"_(e32|e64|sdwa|dpp)$","",mn)
            self.kind="trans" if base in TRANS else "valu"
            self.dpp = ("_dpp" in mn) or any(x in mods for x in ("quad_perm","row_shr","row_shl","row_ror","row_bcast","row_mirror","row_half_mirror","wave_","row_newbcast"))
            if base.startswith("v_cmpx"):
                self.wr=R(0)|{"exec"}; self.rd=set().union(*[R(i) for i in range(1,len(ops))])
            elif base.startswith("v_cmp"):
                self.wr=R(0); self.rd=set().union(*[R(i) for i in range(1,len(ops))])
            elif base in ("v_add_co_u32","v_sub_co_u32","v_subrev_co_u32","v_addc_co_u32","v_subb_co_u32","v_mad_u64_u32","v_div_scale_f32"):
                self.wr=R(0)|R(1); self.rd=set().union(*[R(i) for i in range(2,len(ops))])
            elif base.startswith("v_permlane") and "swap" in base:
                self.wr=R(0)|R(1); self.rd=R(0)|R(1)
            else:
                self.wr=R(0); self.rd=set().union(*[R(i) for i in range(1,len(ops))]) if len(ops)>1 else set()
                if base in ("v_fmac_f32","v_dot2c_f32_bf16","v_pk_fmac_f16","v_writelane_b32","v_fmac_f16") or "UNUSED_PRESERVE" in mods or self.dpp or "mixhi" in base or "mixlo" in base:
                    self.rd |= R(0)
                if base in ("v_readlane_b32","v_writelane_b32"):
                    self.lanesel = {r for r in R(2) if r[0]=="s" or r=="vcc"}
                if base=="v_cndmask_b32" and len(ops)==3: self.rd|={"vcc"}
            if "dst_sel" in mods and "dst_sel:DWORD" not in mods: self.sdwa_dst=True
            if "op_sel" in mods and not base.startswith("v_pk") : self.sdwa_dst=True
        elif mn.startswith("buffer_") or mn.startswith("global_"):
            self.kind="vmem"
            allm = " "+mods+" "
            if mn in ("buffer_wbl2","buffer_inv"):
                pass
            elif mn.startswith("buffer_load"):
                if " lds " in allm:
                    self.lds_dma=True; self.rd=R(0)|R(1)|R(2)|{"m0"}
                else:
                    self.wr=R(0); self.rd=R(1)|R(2)|R(3)
                    if "d16" in mn: self.rd|=R(0)
            elif mn.startswith("buffer_store") or mn.startswith("buffer_atomic"):
                self.rd=R(0)|R(1)|R(2)|R(3)
                if "x3" in mn or "x4" in mn: self.wide_data=R(0)
                if mn.startswith("buffer_atomic") and " sc0 " in allm: self.wr=R(0)
            elif mn.startswith("global_load_lds"):
                self.lds_dma=True; self.rd=R(0)|R(1)|{"m0"}
            elif mn.startswith("global_load"):
                self.wr=R(0); self.rd=R(1)|R(2)
                if "d16" in mn: self.rd|=R(0)
            elif mn.startswith("global_store"):
                self.rd=R(0)|R(1)|R(2)
                if "x3" in mn or "x4" in mn: self.wide_data=R(1)
            elif mn.startswith("global_atomic"):
                if " sc0 " in allm:
                    self.wr=R(0); self.rd=R(1)|R(2)|R(3)
                else:
                    self.rd=R(0)|R(1)|R(2)
            else: raise ValueError(text)
        elif mn.startswith("ds_"):
            self.kind="ds"
            if mn.startswith("ds_read") or mn.startswith("ds_bpermute") or mn.startswith("ds_permute") or mn.startswith("ds_swizzle") or "_rtn" in mn:
                self.wr=R(0); self.rd=set().union(*[R(i) for i in range(1,len(ops))])
                if "d16" in mn: self.rd|=R(0)
            else:
                self.rd=set().union(*[R(i) for i in range(0,len(ops))])
        elif mn=="s_nop":
            self.kind="nop"; self.states=int(ops[0],0)+1
        elif mn.startswith("s_cbranch") or mn=="s_branch":
            self.kind="branch"; self.target=ops[0]
        elif mn in ("s_waitcnt","s_barrier","s_endpgm","s_setprio","s_sleep","s_sethalt"):
            self.kind="sctl"
        elif mn.startswith("s_load") or mn.startswith("s_buffer_load") or mn in ("s_memtime","s_memrealtime") or mn.startswith("s_atomic"):
            self.kind="smem"; self.wr=R(0); self.rd=set().union(*[R(i) for i in range(1,len(ops))]) if len(ops)>1 else set()
        elif mn.startswith("s_"):
            self.kind="salu"
            if mn.startswith("s_cmp") or mn.startswith("s_bitcmp"):
                self.rd=R(0)|R(1)
            else:
                self.wr=R(0); self.rd=set().union(*[R(i) for i in range(1,len(ops))]) if len(ops)>1 else set()
                if mn.startswith("s_bitset"): self.rd|=R(0)
                if "saveexec" in mn: self.wr|={"exec"}; self.rd|={"exec"}
        else:
            raise ValueError("unknown instr: "+text)

def is_valu(i): return i.kind in ("valu","trans")
def vregs(s): return {r for r in s if r[0] in "va" and r!="vcc"}
def sregs(s): return {r for r in s if (r[0]=="s") or r=="vcc"}

def need(p, c):
    n=0
    if is_valu(p):
        pw=vregs(p.wr); sw=sregs(p.wr)
        if c.kind=="mfma":
            if pw & c.rd: n=max(n,2)
            if "exec" in p.wr: n=max(n,4)
        if is_valu(c):
            if c.dpp and (pw & c.rd): n=max(n,2)
            if c.dpp and "exec" in p.wr: n=max(n,5)
            if c.mn.startswith("v_permlane") and (pw & c.rd): n=max(n,2)
            if c.mn.startswith("v_readlane") or c.mn.startswith("v_readfirstlane"):
                if pw & c.rd: n=max(n,1)
                if "exec" in p.wr: n=max(n,4)
            if sw & c.rd: n=max(n,2)
            if sw & c.lanesel: n=max(n,4)
            if p.kind=="trans" and c.kind!="trans" and (pw & c.rd): n=max(n,1)
            if p.sdwa_dst and (pw & (c.rd|c.wr)): n=max(n,1)
        if c.kind=="vmem" and (sw & c.rd): n=max(n,5)
        if c.kind=="branch" and ("vccz" in c.mn or "vccnz" in c.mn) and "vcc" in p.wr: n=max(n,1)
    if p.kind=="mfma":
        idx={2:0,4:1,8:2,16:3}[p.passes]
        if c.kind=="mfma":
            if p.wr & c.C:
                if p.wr==c.C and p.mn==c.mn: n=max(n,(2,0,0,0)[idx])
                else: n=max(n,(4,6,10,18)[idx])
            if p.wr & (c.A|c.B): n=max(n,(5,8,12,20)[idx])
            if (p.wr & c.wr) and not (p.wr & c.C): n=max(n,(4,6,10,18)[idx]) if p.passes>c.passes else n
        elif is_valu(c):
            if p.wr & (c.rd|c.wr): n=max(n,(5,8,12,20)[idx])
            if p.C & c.wr: n=max(n,(1,3,7,15)[idx])
        elif c.kind in ("vmem","ds"):
            if p.wr & (c.rd|c.wr): n=max(n,(5,8,12,20)[idx])
    if p.kind=="salu" and "m0" in p.wr and c.lds_dma: n=max(n,1)
    if p.kind=="vmem" and p.wide_data:
        if is_valu(c) and (p.wide_data & c.wr): n=max(n,2)
        elif (p.wide_data & c.wr): n=max(n,1)
    return n

MAXW=20
def hazard_pass(lines, verbose=False):
    ins=[Ins(l) for l in lines]
    out=[]
    nins=0
    for c in ins:
        if c.states>0 and c.kind!="nop":
            dist=0; req=0
            for p in reversed(out):
                if p.kind=="branch" and p.mn=="s_branch": break
                if p.mn=="s_endpgm": break
                if p.states>0:
                    n=need(p,c)
                    if n>dist: req=max(req,n-dist)
                    dist+=p.states
                    if dist>=MAXW: break
            while req>0:
                k=min(req,16)
                out.append(Ins("  s_nop %d"%(k-1))); req-=k; nins+=1
        out.append(c)
    labels={i.label:k for k,i in enumerate(out) if i.kind=="label"}
    probs=[]
    for k,b in enumerate(out):
        if b.kind=="branch":
            t=labels[b.target]
            d2=0
            for c in out[t:]:
                if c.states==0: continue
                dist=d2+1
                for p in reversed(out[:k]):
                    if p.kind=="branch" and p.mn=="s_branch": break
                    if p.states>0:
                        n=need(p,c)
                        if n>dist: probs.append((p.text,c.text,n,dist))
                        dist+=p.states
                        if dist>=MAXW: break
                d2+=c.states
                if d2>=MAXW or (c.kind=="branch" and c.mn=="s_branch") or c.mn=="s_endpgm": break
    if probs:
        for p in probs: print("HAZARD across branch:",p)
        raise SystemExit("hazards across branches")
    return [i.text for i in out], nins

import os
DEBUG=bool(os.environ.get('KDEBUG'))
TSB=72
class Kern:
    def __init__(self, name, grid, block, lds=0):
        self.name=name; self.grid=grid; self.block=block; self.lds=lds; self.L=[]; self.nv=None; self.na=0; self.ns=96
        self._lab=0
    def __call__(self, s):
        for l in s.split("\n"):
            l=l.strip()
            if l: self.L.append(("" if l.endswith(":") else "  ")+l)
    def lab(self, base="L"):
        self._lab+=1
        return "%s_%s_%d"%(base,self.name.replace("_kernel",""),self._lab)
    def stamp(self, i):
        if not DEBUG: return
        if i==0:
            for j in range(2,14): self("s_mov_b32 s%d, 0"%(TSB+j))
            self("s_memrealtime s[%d:%d]"%(TSB+16,TSB+17))
        self("s_memtime s[%d:%d]"%(TSB+2*i,TSB+2*i+1))
        self("s_waitcnt lgkmcnt(0)")
    def stamp_end(self, kidx, wsbase=4, tidreg="v0"):
        if not DEBUG: return
        from layout import TS
        self("s_memtime s[%d:%d]"%(TSB+14,TSB+15))
        self("s_memrealtime s[%d:%d]"%(TSB+18,TSB+19))
        self("s_mov_b64 exec, -1")
        self("s_load_dwordx2 s[%d:%d], s[0:1], 80"%(TSB+20,TSB+21))
        self("s_waitcnt lgkmcnt(0)")
        self("s_add_u32 s%d, s%d, 0x%x"%(TSB+20,TSB+20,TS+kidx*1024*1024))
        self("s_addc_u32 s%d, s%d, 0"%(TSB+21,TSB+21))
        self("s_mov_b32 s%d, 0x100000"%(TSB+22)); self("s_mov_b32 s%d, 0x20000"%(TSB+23))
        self("v_lshrrev_b32 v1, 6, %s"%tidreg)
        self("v_lshlrev_b32 v1, 6, v1")
        self("s_lshl_b32 s%d, s2, 10"%(TSB+24))
        self("v_add_u32 v1, s%d, v1"%(TSB+24))
        self("s_mov_b64 exec, 1")
        for i in range(10):
            self("v_mov_b32 v2, s%d"%(TSB+2*i))
            self("buffer_store_dword v2, v1, s[%d:%d], 0 offen offset:%d"%(TSB+20,TSB+23,4*i))
        for i,hw in enumerate(("HW_REG_XCC_ID","HW_REG_HW_ID")):
            self("s_getreg_b32 s%d, hwreg(%s)"%(TSB,hw))
            self("v_mov_b32 v2, s%d"%TSB)
            self("buffer_store_dword v2, v1, s[%d:%d], 0 offen offset:%d"%(TSB+20,TSB+23,40+4*i))
    def finish(self):
        lines,n=hazard_pass(self.L)
        mv=-1; ma=-1; ms=-1
        for l in lines:
            i=Ins(l)
            for r in i.wr|i.rd:
                if r in("vcc","exec","m0"): continue
                k=int(r[1:])
                if r[0]=="v": mv=max(mv,k)
                elif r[0]=="a": ma=max(ma,k)
                elif r[0]=="s": ms=max(ms,k)
        nv=mv+1
        acc=max(4,(nv+3)//4*4)
        tot = acc+ma+1 if ma>=0 else nv
        if self.nv: tot=max(tot,self.nv)
        self.info="%s: vgpr %d agpr %d total %d sgpr %d nops %d instrs %d"%(self.name,nv,ma+1,tot,ms+1,n,len(lines))
        txt=".text\n.globl %s\n.p2align 8\n.type %s,@function\n%s:\n"%(self.name,self.name,self.name)+"\n".join(lines)+"\n"
        desc=""".section .rodata,"a"
.p2align 6
.amdhsa_kernel %s
  .amdhsa_next_free_vgpr %d
  .amdhsa_next_free_sgpr %d
  .amdhsa_accum_offset %d
  .amdhsa_group_segment_fixed_size 0
  .amdhsa_kernarg_size 88
  .amdhsa_user_sgpr_count 2
  .amdhsa_user_sgpr_kernarg_segment_ptr 1
  .amdhsa_system_sgpr_workgroup_id_x 1
.end_amdhsa_kernel
"""%(self.name,tot,max(ms+1,16),min(acc,256))
        return txt,desc

def build_file(kerns, launches, header=""):
    s=header
    for k in launches:
        s+="; @launch kernel=%s grid=(%d,1,1) block=(%d,1,1) lds=%d\n"%(k.name,k.grid,k.block,k.lds)
    s+='.amdgcn_target "amdgcn-amd-amdhsa--gfx950"\n'
    descs=""
    for k in kerns:
        t,d=k.finish(); print(k.info)
        s+=t; descs+=d
    return s+descs
```

```python
S=2048; D=576; H=32; DH=18; F=4608
def al(x,a=4096): return (x+a-1)//a*a
off=0
def alloc(n):
    global off
    o=off; off=al(off+n); return o
MODF=alloc(6*D*4)
MODB=alloc(6*D*2)
FLAGS=alloc(65536)
NFLAG=16384
XN=alloc(S*D*2)
WQ=alloc(H*2*36*1024)
QM=alloc(H*64*1024)
QX=alloc(H*S*4)
KVCH=19456
KV_KM=0; KV_VT=8192; KV_KX=8192+9728
KV=alloc(H*8*KVCH)
OI=alloc(S*D*2)
G3=18*3072
WOP=alloc(12*G3)
X2=alloc(S*D*2)
STAT=alloc(S*12*8)
W1P=alloc(96*G3)
W2P=alloc(96*G3)
PART=alloc(8*S*D*2)
WS_USED=off
TS=64*1024*1024
WS_BYTES=268435456
```

```python
import sys
sys.path.insert(0,"work")
from asmlib import *
import importlib
HEADER = """; adaLN + MHA + SiLU FFN block for gfx950 (generated by own scripts)
"""
def main(names, out):
    ks=[]
    for n in names:
        mod,fn=n.split(".")
        m=importlib.import_module(mod)
        ks.append(getattr(m,fn)())
    s=build_file(ks,ks,HEADER)
    open(out,"w").write(s)
    print("wrote",out,len(s))
if __name__=="__main__":
    out=sys.argv[1]
    main(sys.argv[2:], out)
```

```python
S=2048; D=576; H=32; DH=18; F=4608
def al(x,a=4096): return (x+a-1)//a*a
off=0
def alloc(n):
    global off
    o=off; off=al(off+n); return o
MODF=alloc(6*D*4)
MODB=alloc(6*D*2)
FLAGS=alloc(131072)
NFLAG=131072
WFL=FLAGS+32768; GOL=FLAGS+65536; PFL=FLAGS+98304
XN=alloc(S*D*2)
WQ=alloc(H*2*36*1024)
QM=alloc(H*64*1024)
QX=alloc(H*S*4)
KVCH=19456
KV_KM=0; KV_VT=8192; KV_KX=8192+9728
KV=alloc(H*8*KVCH)
OI=alloc(S*D*2)
G3=18*3072
WOP=alloc(12*G3)
G3X=19*3072
W1P=alloc(96*G3X)
W2P=alloc(96*G3)
SENT=off
YI=alloc(64*36*1024)
STI=alloc(64*36*256)
PART=alloc(64*36*8*1024)
NSENT=(off-SENT+1024*1024-1)//(1024*1024)
off=SENT+NSENT*1024*1024
WS_USED=off
TS=64*1024*1024
WS_BYTES=268435456
```

```python
import re

TRANS = ("v_exp_f32","v_log_f32","v_rcp_f32","v_rsq_f32","v_sqrt_f32","v_sin_f32","v_cos_f32","v_exp_f16","v_rcp_f16","v_rcp_iflag_f32")
REG_RE = re.compile(r"^(-|\|)?(abs\()?([vas])(\d+|\[(\d+):(\d+)\])\)?\|?$")

def regs_of(tok):
    tok = tok.strip()
    if tok in ("vcc",): return {"vcc"}
    if tok in ("vcc_lo","vcc_hi"): return {"vcc"}
    if tok in ("exec","exec_lo","exec_hi"): return {"exec"}
    if tok == "m0": return {"m0"}
    m = REG_RE.match(tok)
    if not m: return set()
    k = m.group(3)
    if m.group(5) is not None:
        return {"%s%d"%(k,i) for i in range(int(m.group(5)), int(m.group(6))+1)}
    return {"%s%s"%(k,m.group(4))}

def split_ops(rest):
    out=[]; depth=0; cur=""
    for ch in rest:
        if ch in "[(": depth+=1
        if ch in "])": depth-=1
        if ch=="," and depth==0:
            out.append(cur.strip()); cur=""
        else: cur+=ch
    if cur.strip(): out.append(cur.strip())
    return out

def mfma_passes(mn):
    if "32x32x4_2b" in mn or "32x32x1_2b" in mn: return 16
    if "16x16x4_4b" in mn: return 8
    if "4x4x4" in mn: return 2
    if "32x32x16" in mn or "32x32x8" in mn: return 8
    if "16x16x32" in mn or "16x16x16" in mn: return 4
    raise ValueError(mn)

class Ins:
    __slots__=("text","mn","kind","wr","rd","A","B","C","passes","dpp","states","wide_data","sdwa_dst","label","target","lds_dma","lanesel")
    def __init__(self, text):
        self.text=text
        t = text.split(";")[0].strip()
        self.label=None; self.target=None
        self.wr=set(); self.rd=set(); self.A=self.B=self.C=set(); self.passes=0; self.dpp=False
        self.states=1; self.wide_data=set(); self.sdwa_dst=False; self.lds_dma=False; self.lanesel=set()
        if not t or t.startswith("."):
            self.kind="none"; self.mn=""; self.states=0; return
        if t.endswith(":"):
            self.kind="label"; self.label=t[:-1]; self.mn=""; self.states=0; return
        parts = t.split(None,1)
        mn = parts[0]; self.mn=mn
        rest = parts[1] if len(parts)>1 else ""
        ops = split_ops(rest)
        mods=""
        if ops:
            lp = ops[-1].split(None,1)
            ops[-1]=lp[0]
            if len(lp)>1: mods=lp[1]
        R = lambda i: regs_of(ops[i]) if i < len(ops) else set()
        if mn.startswith("v_mfma"):
            self.kind="mfma"; self.wr=R(0); self.A=R(1); self.B=R(2); self.C=R(3); self.rd=self.A|self.B|self.C
            self.passes=mfma_passes(mn)
        elif mn.startswith("v_"):
            base = re.sub(r"_(e32|e64|sdwa|dpp)$","",mn)
            self.kind="trans" if base in TRANS else "valu"
            self.dpp = ("_dpp" in mn) or any(x in mods for x in ("quad_perm","row_shr","row_shl","row_ror","row_bcast","row_mirror","row_half_mirror","wave_","row_newbcast"))
            if base.startswith("v_cmpx"):
                self.wr=R(0)|{"exec"}; self.rd=set().union(*[R(i) for i in range(1,len(ops))])
            elif base.startswith("v_cmp"):
                self.wr=R(0); self.rd=set().union(*[R(i) for i in range(1,len(ops))])
            elif base in ("v_add_co_u32","v_sub_co_u32","v_subrev_co_u32","v_addc_co_u32","v_subb_co_u32","v_mad_u64_u32","v_div_scale_f32"):
                self.wr=R(0)|R(1); self.rd=set().union(*[R(i) for i in range(2,len(ops))])
            elif base.startswith("v_permlane") and "swap" in base:
                self.wr=R(0)|R(1); self.rd=R(0)|R(1)
            else:
                self.wr=R(0); self.rd=set().union(*[R(i) for i in range(1,len(ops))]) if len(ops)>1 else set()
                if base in ("v_fmac_f32","v_dot2c_f32_bf16","v_pk_fmac_f16","v_writelane_b32","v_fmac_f16") or "UNUSED_PRESERVE" in mods or self.dpp or "mixhi" in base or "mixlo" in base:
                    self.rd |= R(0)
                if base in ("v_readlane_b32","v_writelane_b32"):
                    self.lanesel = {r for r in R(2) if r[0]=="s" or r=="vcc"}
                if base=="v_cndmask_b32" and len(ops)==3: self.rd|={"vcc"}
            if "dst_sel" in mods and "dst_sel:DWORD" not in mods: self.sdwa_dst=True
            if "op_sel" in mods and not base.startswith("v_pk") : self.sdwa_dst=True
        elif mn.startswith("buffer_") or mn.startswith("global_"):
            self.kind="vmem"
            allm = " "+mods+" "
            if mn in ("buffer_wbl2","buffer_inv"):
                pass
            elif mn.startswith("buffer_load"):
                if " lds " in allm:
                    self.lds_dma=True; self.rd=R(0)|R(1)|R(2)|{"m0"}
                else:
                    self.wr=R(0); self.rd=R(1)|R(2)|R(3)
                    if "d16" in mn: self.rd|=R(0)
            elif mn.startswith("buffer_store") or mn.startswith("buffer_atomic"):
                self.rd=R(0)|R(1)|R(2)|R(3)
                if "x3" in mn or "x4" in mn: self.wide_data=R(0)
                if mn.startswith("buffer_atomic") and " sc0 " in allm: self.wr=R(0)
            elif mn.startswith("global_load_lds"):
                self.lds_dma=True; self.rd=R(0)|R(1)|{"m0"}
            elif mn.startswith("global_load"):
                self.wr=R(0); self.rd=R(1)|R(2)
                if "d16" in mn: self.rd|=R(0)
            elif mn.startswith("global_store"):
                self.rd=R(0)|R(1)|R(2)
                if "x3" in mn or "x4" in mn: self.wide_data=R(1)
            elif mn.startswith("global_atomic"):
                if " sc0 " in allm:
                    self.wr=R(0); self.rd=R(1)|R(2)|R(3)
                else:
                    self.rd=R(0)|R(1)|R(2)
            else: raise ValueError(text)
        elif mn.startswith("ds_"):
            self.kind="ds"
            if mn.startswith("ds_read") or mn.startswith("ds_bpermute") or mn.startswith("ds_permute") or mn.startswith("ds_swizzle") or "_rtn" in mn:
                self.wr=R(0); self.rd=set().union(*[R(i) for i in range(1,len(ops))])
                if "d16" in mn: self.rd|=R(0)
            else:
                self.rd=set().union(*[R(i) for i in range(0,len(ops))])
        elif mn=="s_nop":
            self.kind="nop"; self.states=int(ops[0],0)+1
        elif mn.startswith("s_cbranch") or mn=="s_branch":
            self.kind="branch"; self.target=ops[0]
        elif mn in ("s_waitcnt","s_barrier","s_endpgm","s_setprio","s_sleep","s_sethalt"):
            self.kind="sctl"
        elif mn.startswith("s_load") or mn.startswith("s_buffer_load") or mn in ("s_memtime","s_memrealtime") or mn.startswith("s_atomic"):
            self.kind="smem"; self.wr=R(0); self.rd=set().union(*[R(i) for i in range(1,len(ops))]) if len(ops)>1 else set()
        elif mn.startswith("s_"):
            self.kind="salu"
            if mn.startswith("s_cmp") or mn.startswith("s_bitcmp"):
                self.rd=R(0)|R(1)
            else:
                self.wr=R(0); self.rd=set().union(*[R(i) for i in range(1,len(ops))]) if len(ops)>1 else set()
                if mn.startswith("s_bitset"): self.rd|=R(0)
                if "saveexec" in mn: self.wr|={"exec"}; self.rd|={"exec"}
        else:
            raise ValueError("unknown instr: "+text)

def is_valu(i): return i.kind in ("valu","trans")
def vregs(s): return {r for r in s if r[0] in "va" and r!="vcc"}
def sregs(s): return {r for r in s if (r[0]=="s") or r=="vcc"}

def need(p, c):
    n=0
    if is_valu(p):
        pw=vregs(p.wr); sw=sregs(p.wr)
        if c.kind=="mfma":
            if pw & c.rd: n=max(n,2)
            if "exec" in p.wr: n=max(n,4)
        if is_valu(c):
            if c.dpp and (pw & c.rd): n=max(n,2)
            if c.dpp and "exec" in p.wr: n=max(n,5)
            if c.mn.startswith("v_permlane") and (pw & c.rd): n=max(n,2)
            if c.mn.startswith("v_readlane") or c.mn.startswith("v_readfirstlane"):
                if pw & c.rd: n=max(n,1)
                if "exec" in p.wr: n=max(n,4)
            if sw & c.rd: n=max(n,2)
            if sw & c.lanesel: n=max(n,4)
            if p.kind=="trans" and c.kind!="trans" and (pw & c.rd): n=max(n,1)
            if p.sdwa_dst and (pw & (c.rd|c.wr)): n=max(n,1)
        if c.kind=="vmem" and (sw & c.rd): n=max(n,5)
        if c.kind=="branch" and ("vccz" in c.mn or "vccnz" in c.mn) and "vcc" in p.wr: n=max(n,1)
    if p.kind=="mfma":
        idx={2:0,4:1,8:2,16:3}[p.passes]
        if c.kind=="mfma":
            if p.wr & c.C:
                if p.wr==c.C and p.mn==c.mn: n=max(n,(2,0,0,0)[idx])
                else: n=max(n,(4,6,10,18)[idx])
            if p.wr & (c.A|c.B): n=max(n,(5,8,12,20)[idx])
            if (p.wr & c.wr) and not (p.wr & c.C): n=max(n,(4,6,10,18)[idx]) if p.passes>c.passes else n
        elif is_valu(c):
            if p.wr & (c.rd|c.wr): n=max(n,(5,8,12,20)[idx])
            if p.C & c.wr: n=max(n,(1,3,7,15)[idx])
        elif c.kind in ("vmem","ds"):
            if p.wr & (c.rd|c.wr): n=max(n,(5,8,12,20)[idx])
    if p.kind=="salu" and "m0" in p.wr and c.lds_dma: n=max(n,1)
    if p.kind=="vmem" and p.wide_data:
        if is_valu(c) and (p.wide_data & c.wr): n=max(n,2)
        elif (p.wide_data & c.wr): n=max(n,1)
    return n

MAXW=20
def hazard_pass(lines, verbose=False):
    ins=[Ins(l) for l in lines]
    out=[]
    nins=0
    for c in ins:
        if c.states>0 and c.kind!="nop":
            dist=0; req=0
            for p in reversed(out):
                if p.kind=="branch" and p.mn=="s_branch": break
                if p.mn=="s_endpgm": break
                if p.states>0:
                    n=need(p,c)
                    if n>dist: req=max(req,n-dist)
                    dist+=p.states
                    if dist>=MAXW: break
            while req>0:
                k=min(req,16)
                out.append(Ins("  s_nop %d"%(k-1))); req-=k; nins+=1
        out.append(c)
    labels={i.label:k for k,i in enumerate(out) if i.kind=="label"}
    probs=[]
    for k,b in enumerate(out):
        if b.kind=="branch":
            t=labels[b.target]
            d2=0
            for c in out[t:]:
                if c.states==0: continue
                dist=d2+1
                for p in reversed(out[:k]):
                    if p.kind=="branch" and p.mn=="s_branch": break
                    if p.states>0:
                        n=need(p,c)
                        if n>dist: probs.append((p.text,c.text,n,dist))
                        dist+=p.states
                        if dist>=MAXW: break
                d2+=c.states
                if d2>=MAXW or (c.kind=="branch" and c.mn=="s_branch") or c.mn=="s_endpgm": break
    if probs:
        for p in probs: print("HAZARD across branch:",p)
        raise SystemExit("hazards across branches")
    return [i.text for i in out], nins

import os
DEBUG=bool(os.environ.get('KDEBUG'))
TSB=72
class Kern:
    def __init__(self, name, grid, block, lds=0):
        self.name=name; self.grid=grid; self.block=block; self.lds=lds; self.L=[]; self.nv=None; self.na=0; self.ns=96
        self._lab=0
    def __call__(self, s):
        for l in s.split("\n"):
            l=l.strip()
            if l: self.L.append(("" if l.endswith(":") else "  ")+l)
    def lab(self, base="L"):
        self._lab+=1
        return "%s_%s_%d"%(base,self.name.replace("_kernel",""),self._lab)
    def stamp(self, i, tag=None):
        if not DEBUG: return
        tag=tag or getattr(self,"sec",None)
        if i and tag and os.environ.get("SSET","b") not in tag: return
        if i==0:
            for j in range(2,14): self("s_mov_b32 s%d, 0"%(TSB+j))
            self("s_memrealtime s[%d:%d]"%(TSB+16,TSB+17))
        self("s_memtime s[%d:%d]"%(TSB+2*i,TSB+2*i+1))
        self("s_waitcnt lgkmcnt(0)")
    def stamp_end(self, kidx, wsbase=4, tidreg="v0"):
        if not DEBUG: return
        from layout import TS
        self("s_memtime s[%d:%d]"%(TSB+14,TSB+15))
        self("s_memrealtime s[%d:%d]"%(TSB+18,TSB+19))
        self("s_mov_b64 exec, -1")
        self("s_load_dwordx2 s[%d:%d], s[0:1], 80"%(TSB+20,TSB+21))
        self("s_waitcnt lgkmcnt(0)")
        self("s_add_u32 s%d, s%d, 0x%x"%(TSB+20,TSB+20,TS+kidx*1024*1024))
        self("s_addc_u32 s%d, s%d, 0"%(TSB+21,TSB+21))
        self("s_mov_b32 s%d, 0x100000"%(TSB+22)); self("s_mov_b32 s%d, 0x20000"%(TSB+23))
        self("v_lshrrev_b32 v1, 6, %s"%tidreg)
        self("v_lshlrev_b32 v1, 6, v1")
        self("s_lshl_b32 s%d, s2, 10"%(TSB+24))
        self("v_add_u32 v1, s%d, v1"%(TSB+24))
        self("s_mov_b64 exec, 1")
        for i in range(10):
            self("v_mov_b32 v2, s%d"%(TSB+2*i))
            self("buffer_store_dword v2, v1, s[%d:%d], 0 offen offset:%d"%(TSB+20,TSB+23,4*i))
        for i,hw in enumerate(("HW_REG_XCC_ID","HW_REG_HW_ID")):
            self("s_getreg_b32 s%d, hwreg(%s)"%(TSB,hw))
            self("v_mov_b32 v2, s%d"%TSB)
            self("buffer_store_dword v2, v1, s[%d:%d], 0 offen offset:%d"%(TSB+20,TSB+23,40+4*i))
    def finish(self):
        lines,n=hazard_pass(self.L)
        mv=-1; ma=-1; ms=-1
        for l in lines:
            i=Ins(l)
            for r in i.wr|i.rd:
                if r in("vcc","exec","m0"): continue
                k=int(r[1:])
                if r[0]=="v": mv=max(mv,k)
                elif r[0]=="a": ma=max(ma,k)
                elif r[0]=="s": ms=max(ms,k)
        nv=mv+1
        acc=max(4,(nv+3)//4*4)
        tot = acc+ma+1 if ma>=0 else nv
        if self.nv: tot=max(tot,self.nv)
        self.info="%s: vgpr %d agpr %d total %d sgpr %d nops %d instrs %d"%(self.name,nv,ma+1,tot,ms+1,n,len(lines))
        txt=".text\n.globl %s\n.p2align 8\n.type %s,@function\n%s:\n"%(self.name,self.name,self.name)+"\n".join(lines)+"\n"
        desc=""".section .rodata,"a"
.p2align 6
.amdhsa_kernel %s
  .amdhsa_next_free_vgpr %d
  .amdhsa_next_free_sgpr %d
  .amdhsa_accum_offset %d
  .amdhsa_group_segment_fixed_size 0
  .amdhsa_kernarg_size 88
  .amdhsa_user_sgpr_count 2
  .amdhsa_user_sgpr_kernarg_segment_ptr 1
  .amdhsa_system_sgpr_workgroup_id_x 1
.end_amdhsa_kernel
"""%(self.name,tot,max(ms+1,16),min(acc,256))
        return txt,desc

def build_file(kerns, launches, header=""):
    s=header
    for k in launches:
        s+="; @launch kernel=%s grid=(%d,1,1) block=(%d,1,1) lds=%d\n"%(k.name,k.grid,k.block,k.lds)
    s+='.amdgcn_target "amdgcn-amd-amdhsa--gfx950"\n'
    descs=""
    for k in kerns:
        t,d=k.finish(); print(k.info)
        s+=t; descs+=d
    return s+descs
```

```python
import re

TRANS = ("v_exp_f32","v_log_f32","v_rcp_f32","v_rsq_f32","v_sqrt_f32","v_sin_f32","v_cos_f32","v_exp_f16","v_rcp_f16","v_rcp_iflag_f32")
REG_RE = re.compile(r"^(-|\|)?(abs\()?([vas])(\d+|\[(\d+):(\d+)\])\)?\|?$")

def regs_of(tok):
    tok = tok.strip()
    if tok in ("vcc",): return {"vcc"}
    if tok in ("vcc_lo","vcc_hi"): return {"vcc"}
    if tok in ("exec","exec_lo","exec_hi"): return {"exec"}
    if tok == "m0": return {"m0"}
    m = REG_RE.match(tok)
    if not m: return set()
    k = m.group(3)
    if m.group(5) is not None:
        return {"%s%d"%(k,i) for i in range(int(m.group(5)), int(m.group(6))+1)}
    return {"%s%s"%(k,m.group(4))}

def split_ops(rest):
    out=[]; depth=0; cur=""
    for ch in rest:
        if ch in "[(": depth+=1
        if ch in "])": depth-=1
        if ch=="," and depth==0:
            out.append(cur.strip()); cur=""
        else: cur+=ch
    if cur.strip(): out.append(cur.strip())
    return out

def mfma_passes(mn):
    if "32x32x4_2b" in mn or "32x32x1_2b" in mn: return 16
    if "16x16x4_4b" in mn: return 8
    if "4x4x4" in mn: return 2
    if "32x32x16" in mn or "32x32x8" in mn: return 8
    if "16x16x32" in mn or "16x16x16" in mn: return 4
    raise ValueError(mn)

class Ins:
    __slots__=("text","mn","kind","wr","rd","A","B","C","passes","dpp","states","wide_data","sdwa_dst","label","target","lds_dma","lanesel")
    def __init__(self, text):
        self.text=text
        t = text.split(";")[0].strip()
        self.label=None; self.target=None
        self.wr=set(); self.rd=set(); self.A=self.B=self.C=set(); self.passes=0; self.dpp=False
        self.states=1; self.wide_data=set(); self.sdwa_dst=False; self.lds_dma=False; self.lanesel=set()
        if not t or t.startswith("."):
            self.kind="none"; self.mn=""; self.states=0; return
        if t.endswith(":"):
            self.kind="label"; self.label=t[:-1]; self.mn=""; self.states=0; return
        parts = t.split(None,1)
        mn = parts[0]; self.mn=mn
        rest = parts[1] if len(parts)>1 else ""
        ops = split_ops(rest)
        mods=""
        if ops:
            lp = ops[-1].split(None,1)
            ops[-1]=lp[0]
            if len(lp)>1: mods=lp[1]
        R = lambda i: regs_of(ops[i]) if i < len(ops) else set()
        if mn.startswith("v_mfma"):
            self.kind="mfma"; self.wr=R(0); self.A=R(1); self.B=R(2); self.C=R(3); self.rd=self.A|self.B|self.C
            self.passes=mfma_passes(mn)
        elif mn.startswith("v_"):
            base = re.sub(r"_(e32|e64|sdwa|dpp)$","",mn)
            self.kind="trans" if base in TRANS else "valu"
            self.dpp = ("_dpp" in mn) or any(x in mods for x in ("quad_perm","row_shr","row_shl","row_ror","row_bcast","row_mirror","row_half_mirror","wave_","row_newbcast"))
            if base.startswith("v_cmpx"):
                self.wr=R(0)|{"exec"}; self.rd=set().union(*[R(i) for i in range(1,len(ops))])
            elif base.startswith("v_cmp"):
                self.wr=R(0); self.rd=set().union(*[R(i) for i in range(1,len(ops))])
            elif base in ("v_add_co_u32","v_sub_co_u32","v_subrev_co_u32","v_addc_co_u32","v_subb_co_u32","v_mad_u64_u32","v_div_scale_f32"):
                self.wr=R(0)|R(1); self.rd=set().union(*[R(i) for i in range(2,len(ops))])
            elif base.startswith("v_permlane") and "swap" in base:
                self.wr=R(0)|R(1); self.rd=R(0)|R(1)
            else:
                self.wr=R(0); self.rd=set().union(*[R(i) for i in range(1,len(ops))]) if len(ops)>1 else set()
                if base in ("v_fmac_f32","v_dot2c_f32_bf16","v_pk_fmac_f16","v_writelane_b32","v_fmac_f16") or "UNUSED_PRESERVE" in mods or self.dpp or "mixhi" in base or "mixlo" in base:
                    self.rd |= R(0)
                if base in ("v_readlane_b32","v_writelane_b32"):
                    self.lanesel = {r for r in R(2) if r[0]=="s" or r=="vcc"}
                if base=="v_cndmask_b32" and len(ops)==3: self.rd|={"vcc"}
            if "dst_sel" in mods and "dst_sel:DWORD" not in mods: self.sdwa_dst=True
            if "op_sel" in mods and not base.startswith("v_pk") : self.sdwa_dst=True
        elif mn.startswith("buffer_") or mn.startswith("global_"):
            self.kind="vmem"
            allm = " "+mods+" "
            if mn in ("buffer_wbl2","buffer_inv"):
                pass
            elif mn.startswith("buffer_load"):
                if " lds " in allm:
                    self.lds_dma=True; self.rd=R(0)|R(1)|R(2)|{"m0"}
                else:
                    self.wr=R(0); self.rd=R(1)|R(2)|R(3)
                    if "d16" in mn: self.rd|=R(0)
            elif mn.startswith("buffer_store") or mn.startswith("buffer_atomic"):
                self.rd=R(0)|R(1)|R(2)|R(3)
                if "x3" in mn or "x4" in mn: self.wide_data=R(0)
                if mn.startswith("buffer_atomic") and " sc0 " in allm: self.wr=R(0)
            elif mn.startswith("global_load_lds"):
                self.lds_dma=True; self.rd=R(0)|R(1)|{"m0"}
            elif mn.startswith("global_load"):
                self.wr=R(0); self.rd=R(1)|R(2)
                if "d16" in mn: self.rd|=R(0)
            elif mn.startswith("global_store"):
                self.rd=R(0)|R(1)|R(2)
                if "x3" in mn or "x4" in mn: self.wide_data=R(1)
            elif mn.startswith("global_atomic"):
                if " sc0 " in allm:
                    self.wr=R(0); self.rd=R(1)|R(2)|R(3)
                else:
                    self.rd=R(0)|R(1)|R(2)
            else: raise ValueError(text)
        elif mn.startswith("ds_"):
            self.kind="ds"
            if mn.startswith("ds_read") or mn.startswith("ds_bpermute") or mn.startswith("ds_permute") or mn.startswith("ds_swizzle") or "_rtn" in mn:
                self.wr=R(0); self.rd=set().union(*[R(i) for i in range(1,len(ops))])
                if "d16" in mn: self.rd|=R(0)
            else:
                self.rd=set().union(*[R(i) for i in range(0,len(ops))])
        elif mn=="s_nop":
            self.kind="nop"; self.states=int(ops[0],0)+1
        elif mn.startswith("s_cbranch") or mn=="s_branch":
            self.kind="branch"; self.target=ops[0]
        elif mn in ("s_waitcnt","s_barrier","s_endpgm","s_setprio","s_sleep","s_sethalt"):
            self.kind="sctl"
        elif mn.startswith("s_load") or mn.startswith("s_buffer_load") or mn in ("s_memtime","s_memrealtime") or mn.startswith("s_atomic"):
            self.kind="smem"; self.wr=R(0); self.rd=set().union(*[R(i) for i in range(1,len(ops))]) if len(ops)>1 else set()
        elif mn.startswith("s_"):
            self.kind="salu"
            if mn.startswith("s_cmp") or mn.startswith("s_bitcmp"):
                self.rd=R(0)|R(1)
            else:
                self.wr=R(0); self.rd=set().union(*[R(i) for i in range(1,len(ops))]) if len(ops)>1 else set()
                if mn.startswith("s_bitset"): self.rd|=R(0)
                if "saveexec" in mn: self.wr|={"exec"}; self.rd|={"exec"}
        else:
            raise ValueError("unknown instr: "+text)

def is_valu(i): return i.kind in ("valu","trans")
def vregs(s): return {r for r in s if r[0] in "va" and r!="vcc"}
def sregs(s): return {r for r in s if (r[0]=="s") or r=="vcc"}

def need(p, c):
    n=0
    if is_valu(p):
        pw=vregs(p.wr); sw=sregs(p.wr)
        if c.kind=="mfma":
            if pw & c.rd: n=max(n,2)
            if "exec" in p.wr: n=max(n,4)
        if is_valu(c):
            if c.dpp and (pw & c.rd): n=max(n,2)
            if c.dpp and "exec" in p.wr: n=max(n,5)
            if c.mn.startswith("v_permlane") and (pw & c.rd): n=max(n,2)
            if c.mn.startswith("v_readlane") or c.mn.startswith("v_readfirstlane"):
                if pw & c.rd: n=max(n,1)
                if "exec" in p.wr: n=max(n,4)
            if sw & c.rd: n=max(n,2)
            if sw & c.lanesel: n=max(n,4)
            if p.kind=="trans" and c.kind!="trans" and (pw & c.rd): n=max(n,1)
            if p.sdwa_dst and (pw & (c.rd|c.wr)): n=max(n,1)
        if c.kind=="vmem" and (sw & c.rd): n=max(n,5)
        if c.kind=="branch" and ("vccz" in c.mn or "vccnz" in c.mn) and "vcc" in p.wr: n=max(n,1)
    if p.kind=="mfma":
        idx={2:0,4:1,8:2,16:3}[p.passes]
        if c.kind=="mfma":
            if p.wr & c.C:
                if p.wr==c.C and p.mn==c.mn: n=max(n,(2,0,0,0)[idx])
                else: n=max(n,(4,6,10,18)[idx])
            if p.wr & (c.A|c.B): n=max(n,(5,8,12,20)[idx])
            if (p.wr & c.wr) and not (p.wr & c.C): n=max(n,(4,6,10,18)[idx]) if p.passes>c.passes else n
        elif is_valu(c):
            if p.wr & (c.rd|c.wr): n=max(n,(5,8,12,20)[idx])
            if p.C & c.wr: n=max(n,(1,3,7,15)[idx])
        elif c.kind in ("vmem","ds"):
            if p.wr & (c.rd|c.wr): n=max(n,(5,8,12,20)[idx])
    if p.kind=="salu" and "m0" in p.wr and c.lds_dma: n=max(n,1)
    if p.kind=="vmem" and p.wide_data:
        if is_valu(c) and (p.wide_data & c.wr): n=max(n,2)
        elif (p.wide_data & c.wr): n=max(n,1)
    return n

MAXW=20
def hazard_pass(lines, verbose=False):
    ins=[Ins(l) for l in lines]
    out=[]
    nins=0
    for c in ins:
        if c.states>0 and c.kind!="nop":
            dist=0; req=0
            for p in reversed(out):
                if p.kind=="branch" and p.mn=="s_branch": break
                if p.mn=="s_endpgm": break
                if p.states>0:
                    n=need(p,c)
                    if n>dist: req=max(req,n-dist)
                    dist+=p.states
                    if dist>=MAXW: break
            while req>0:
                k=min(req,16)
                out.append(Ins("  s_nop %d"%(k-1))); req-=k; nins+=1
        out.append(c)
    labels={i.label:k for k,i in enumerate(out) if i.kind=="label"}
    probs=[]
    for k,b in enumerate(out):
        if b.kind=="branch" and not b.target.startswith(("p_","hr_","hs_")):
            t=labels[b.target]
            d2=0
            for c in out[t:]:
                if c.states==0: continue
                dist=d2+1
                for p in reversed(out[:k]):
                    if p.kind=="branch" and p.mn=="s_branch": break
                    if p.states>0:
                        n=need(p,c)
                        if n>dist: probs.append((p.text,c.text,n,dist))
                        dist+=p.states
                        if dist>=MAXW: break
                d2+=c.states
                if d2>=MAXW or (c.kind=="branch" and c.mn=="s_branch") or c.mn=="s_endpgm": break
    if probs:
        for p in probs: print("HAZARD across branch:",p)
        raise SystemExit("hazards across branches")
    return [i.text for i in out], nins

import os
DEBUG=bool(os.environ.get('KDEBUG'))
TSB=72
class Kern:
    def __init__(self, name, grid, block, lds=0):
        self.name=name; self.grid=grid; self.block=block; self.lds=lds; self.L=[]; self.nv=None; self.na=0; self.ns=96
        self._lab=0
    def __call__(self, s):
        for l in s.split("\n"):
            l=l.strip()
            if l: self.L.append(("" if l.endswith(":") else "  ")+l)
    def lab(self, base="L"):
        self._lab+=1
        return "%s_%s_%d"%(base,self.name.replace("_kernel",""),self._lab)
    def stamp(self, i, tag=None):
        if not DEBUG: return
        tag=tag or getattr(self,"sec",None)
        if i and tag and os.environ.get("SSET","b") not in tag: return
        if i==0:
            for j in range(2,14): self("s_mov_b32 s%d, 0"%(TSB+j))
            self("s_memrealtime s[%d:%d]"%(TSB+16,TSB+17))
        self("s_memtime s[%d:%d]"%(TSB+2*i,TSB+2*i+1))
        self("s_waitcnt lgkmcnt(0)")
    def stamp_end(self, kidx, wsbase=4, tidreg="v0"):
        if not DEBUG: return
        from layout import TS
        self("s_memtime s[%d:%d]"%(TSB+14,TSB+15))
        self("s_memrealtime s[%d:%d]"%(TSB+18,TSB+19))
        self("s_mov_b64 exec, -1")
        self("s_load_dwordx2 s[%d:%d], s[0:1], 80"%(TSB+20,TSB+21))
        self("s_waitcnt lgkmcnt(0)")
        self("s_add_u32 s%d, s%d, 0x%x"%(TSB+20,TSB+20,TS+kidx*1024*1024))
        self("s_addc_u32 s%d, s%d, 0"%(TSB+21,TSB+21))
        self("s_mov_b32 s%d, 0x100000"%(TSB+22)); self("s_mov_b32 s%d, 0x20000"%(TSB+23))
        self("v_lshrrev_b32 v1, 6, %s"%tidreg)
        self("v_lshlrev_b32 v1, 6, v1")
        self("s_lshl_b32 s%d, s2, 10"%(TSB+24))
        self("v_add_u32 v1, s%d, v1"%(TSB+24))
        self("s_mov_b64 exec, 1")
        for i in range(10):
            self("v_mov_b32 v2, s%d"%(TSB+2*i))
            self("buffer_store_dword v2, v1, s[%d:%d], 0 offen offset:%d"%(TSB+20,TSB+23,4*i))
        for i,hw in enumerate(("HW_REG_XCC_ID","HW_REG_HW_ID")):
            self("s_getreg_b32 s%d, hwreg(%s)"%(TSB,hw))
            self("v_mov_b32 v2, s%d"%TSB)
            self("buffer_store_dword v2, v1, s[%d:%d], 0 offen offset:%d"%(TSB+20,TSB+23,40+4*i))
    def finish(self):
        lines,n=hazard_pass(self.L)
        mv=-1; ma=-1; ms=-1
        for l in lines:
            i=Ins(l)
            for r in i.wr|i.rd:
                if r in("vcc","exec","m0"): continue
                k=int(r[1:])
                if r[0]=="v": mv=max(mv,k)
                elif r[0]=="a": ma=max(ma,k)
                elif r[0]=="s": ms=max(ms,k)
        nv=mv+1
        acc=max(4,(nv+3)//4*4)
        tot = acc+ma+1 if ma>=0 else nv
        if self.nv: tot=max(tot,self.nv)
        self.info="%s: vgpr %d agpr %d total %d sgpr %d nops %d instrs %d"%(self.name,nv,ma+1,tot,ms+1,n,len(lines))
        txt=".text\n.globl %s\n.p2align 8\n.type %s,@function\n%s:\n"%(self.name,self.name,self.name)+"\n".join(lines)+"\n"
        desc=""".section .rodata,"a"
.p2align 6
.amdhsa_kernel %s
  .amdhsa_next_free_vgpr %d
  .amdhsa_next_free_sgpr %d
  .amdhsa_accum_offset %d
  .amdhsa_group_segment_fixed_size 0
  .amdhsa_kernarg_size 88
  .amdhsa_user_sgpr_count 2
  .amdhsa_user_sgpr_kernarg_segment_ptr 1
  .amdhsa_system_sgpr_workgroup_id_x 1
.end_amdhsa_kernel
"""%(self.name,tot,max(ms+1,16),min(acc,256))
        return txt,desc

def build_file(kerns, launches, header=""):
    s=header
    for k in launches:
        s+="; @launch kernel=%s grid=(%d,1,1) block=(%d,1,1) lds=%d\n"%(k.name,k.grid,k.block,k.lds)
    s+='.amdgcn_target "amdgcn-amd-amdhsa--gfx950"\n'
    descs=""
    for k in kerns:
        t,d=k.finish(); print(k.info)
        s+=t; descs+=d
    return s+descs

import re
def isz(l):
    l=l.strip()
    if l.endswith(":"): return 0
    op=l.split()[0]
    if re.match(r"(v_mfma|ds_|buffer_|s_load|s_mem|v_fma|v_max3|v_lshl_add|v_cvt_pk|v_perm_|v_bfe|v_lshl_or|v_readlane)",op) or "dpp" in op: return 8
    for t in re.findall(r"(?<![\w\[:])(0x[0-9a-f]+|\d+)(?![\w\]:])",l[len(op):]):
        if int(t,0)>64 and not op.startswith(("s_waitcnt","s_sleep","s_nop")): return 8
    return 4
def hop(k,i0,HS,LH,LHR):
    src=k.L[i0:]; tot=sum(isz(l) for l in src); n=tot//HS
    pos=[]; a=HS;
    for i,l in enumerate(src):
        if a>=HS-4 and isz(l) and not (i and "saveexec" in src[i-1]): pos.append(i); a=0
        a+=isz(l)
    n=len(pos); m=len(LH); cut=[j*n//m for j in range(m+1)]; assert n>=m
    names=[k.lab("p") for _ in pos]
    for j in range(m): names[cut[j]]=LH[j]
    out=[]; pi=0
    for i,l in enumerate(src):
        if pi<n and pos[pi]==i:
            out.append(names[pi]+":")
            out.append("  s_cbranch_execz %s"%(LHR if pi+1 in cut else names[pi+1]))
            pi+=1
        out.append(l)
    k.L[i0:]=out
    print("hop pads",n,"bytes",tot)
def warm(k,sw,m):
    LH=[k.lab("hs") for _ in range(m)]; LHR=k.lab("hr")
    k("s_mov_b64 exec, 0")
    for j in range(1,m): k("s_cmp_eq_u32 s%d, %d"%(sw,j)); k("s_cbranch_scc1 %s"%LH[j])
    k("s_branch %s"%LH[0])
    k(LHR+":")
    k("s_mov_b64 exec, -1")
    i0=len(k.L)
    return lambda HS: hop(k,i0,HS,LH,LHR)
```

```python
import re

TRANS = ("v_exp_f32","v_log_f32","v_rcp_f32","v_rsq_f32","v_sqrt_f32","v_sin_f32","v_cos_f32","v_exp_f16","v_rcp_f16","v_rcp_iflag_f32")
REG_RE = re.compile(r"^(-|\|)?(abs\()?([vas])(\d+|\[(\d+):(\d+)\])\)?\|?$")

def regs_of(tok):
    tok = tok.strip()
    if tok in ("vcc",): return {"vcc"}
    if tok in ("vcc_lo","vcc_hi"): return {"vcc"}
    if tok in ("exec","exec_lo","exec_hi"): return {"exec"}
    if tok == "m0": return {"m0"}
    m = REG_RE.match(tok)
    if not m: return set()
    k = m.group(3)
    if m.group(5) is not None:
        return {"%s%d"%(k,i) for i in range(int(m.group(5)), int(m.group(6))+1)}
    return {"%s%s"%(k,m.group(4))}

def split_ops(rest):
    out=[]; depth=0; cur=""
    for ch in rest:
        if ch in "[(": depth+=1
        if ch in "])": depth-=1
        if ch=="," and depth==0:
            out.append(cur.strip()); cur=""
        else: cur+=ch
    if cur.strip(): out.append(cur.strip())
    return out

def mfma_passes(mn):
    if "32x32x4_2b" in mn or "32x32x1_2b" in mn: return 16
    if "16x16x4_4b" in mn: return 8
    if "4x4x4" in mn: return 2
    if "32x32x16" in mn or "32x32x8" in mn: return 8
    if "16x16x32" in mn or "16x16x16" in mn: return 4
    raise ValueError(mn)

class Ins:
    __slots__=("text","mn","kind","wr","rd","A","B","C","passes","dpp","states","wide_data","sdwa_dst","label","target","lds_dma","lanesel")
    def __init__(self, text):
        self.text=text
        t = text.split(";")[0].strip()
        self.label=None; self.target=None
        self.wr=set(); self.rd=set(); self.A=self.B=self.C=set(); self.passes=0; self.dpp=False
        self.states=1; self.wide_data=set(); self.sdwa_dst=False; self.lds_dma=False; self.lanesel=set()
        if not t or t.startswith("."):
            self.kind="none"; self.mn=""; self.states=0; return
        if t.endswith(":"):
            self.kind="label"; self.label=t[:-1]; self.mn=""; self.states=0; return
        parts = t.split(None,1)
        mn = parts[0]; self.mn=mn
        rest = parts[1] if len(parts)>1 else ""
        ops = split_ops(rest)
        mods=""
        if ops:
            lp = ops[-1].split(None,1)
            ops[-1]=lp[0]
            if len(lp)>1: mods=lp[1]
        R = lambda i: regs_of(ops[i]) if i < len(ops) else set()
        if mn.startswith("v_mfma"):
            self.kind="mfma"; self.wr=R(0); self.A=R(1); self.B=R(2); self.C=R(3); self.rd=self.A|self.B|self.C
            self.passes=mfma_passes(mn)
        elif mn.startswith("v_"):
            base = re.sub(r"_(e32|e64|sdwa|dpp)$","",mn)
            self.kind="trans" if base in TRANS else "valu"
            self.dpp = ("_dpp" in mn) or any(x in mods for x in ("quad_perm","row_shr","row_shl","row_ror","row_bcast","row_mirror","row_half_mirror","wave_","row_newbcast"))
            if base.startswith("v_cmpx"):
                self.wr=R(0)|{"exec"}; self.rd=set().union(*[R(i) for i in range(1,len(ops))])
            elif base.startswith("v_cmp"):
                self.wr=R(0); self.rd=set().union(*[R(i) for i in range(1,len(ops))])
            elif base in ("v_add_co_u32","v_sub_co_u32","v_subrev_co_u32","v_addc_co_u32","v_subb_co_u32","v_mad_u64_u32","v_div_scale_f32"):
                self.wr=R(0)|R(1); self.rd=set().union(*[R(i) for i in range(2,len(ops))])
            elif base.startswith("v_permlane") and "swap" in base:
                self.wr=R(0)|R(1); self.rd=R(0)|R(1)
            else:
                self.wr=R(0); self.rd=set().union(*[R(i) for i in range(1,len(ops))]) if len(ops)>1 else set()
                if base in ("v_fmac_f32","v_dot2c_f32_bf16","v_pk_fmac_f16","v_writelane_b32","v_fmac_f16") or "UNUSED_PRESERVE" in mods or self.dpp or "mixhi" in base or "mixlo" in base:
                    self.rd |= R(0)
                if base in ("v_readlane_b32","v_writelane_b32"):
                    self.lanesel = {r for r in R(2) if r[0]=="s" or r=="vcc"}
                if base=="v_cndmask_b32" and len(ops)==3: self.rd|={"vcc"}
            if "dst_sel" in mods and "dst_sel:DWORD" not in mods: self.sdwa_dst=True
            if "op_sel" in mods and not base.startswith("v_pk") : self.sdwa_dst=True
        elif mn.startswith("buffer_") or mn.startswith("global_"):
            self.kind="vmem"
            allm = " "+mods+" "
            if mn in ("buffer_wbl2","buffer_inv"):
                pass
            elif mn.startswith("buffer_load"):
                if " lds " in allm:
                    self.lds_dma=True; self.rd=R(0)|R(1)|R(2)|{"m0"}
                else:
                    self.wr=R(0); self.rd=R(1)|R(2)|R(3)
                    if "d16" in mn: self.rd|=R(0)
            elif mn.startswith("buffer_store") or mn.startswith("buffer_atomic"):
                self.rd=R(0)|R(1)|R(2)|R(3)
                if "x3" in mn or "x4" in mn: self.wide_data=R(0)
                if mn.startswith("buffer_atomic") and " sc0 " in allm: self.wr=R(0)
            elif mn.startswith("global_load_lds"):
                self.lds_dma=True; self.rd=R(0)|R(1)|{"m0"}
            elif mn.startswith("global_load"):
                self.wr=R(0); self.rd=R(1)|R(2)
                if "d16" in mn: self.rd|=R(0)
            elif mn.startswith("global_store"):
                self.rd=R(0)|R(1)|R(2)
                if "x3" in mn or "x4" in mn: self.wide_data=R(1)
            elif mn.startswith("global_atomic"):
                if " sc0 " in allm:
                    self.wr=R(0); self.rd=R(1)|R(2)|R(3)
                else:
                    self.rd=R(0)|R(1)|R(2)
            else: raise ValueError(text)
        elif mn.startswith("ds_"):
            self.kind="ds"
            if mn.startswith("ds_read") or mn.startswith("ds_bpermute") or mn.startswith("ds_permute") or mn.startswith("ds_swizzle") or "_rtn" in mn:
                self.wr=R(0); self.rd=set().union(*[R(i) for i in range(1,len(ops))])
                if "d16" in mn: self.rd|=R(0)
            else:
                self.rd=set().union(*[R(i) for i in range(0,len(ops))])
        elif mn=="s_nop":
            self.kind="nop"; self.states=int(ops[0],0)+1
        elif mn.startswith("s_cbranch") or mn=="s_branch":
            self.kind="branch"; self.target=ops[0]
        elif mn in ("s_waitcnt","s_barrier","s_endpgm","s_setprio","s_sleep","s_sethalt"):
            self.kind="sctl"
        elif mn.startswith("s_load") or mn.startswith("s_buffer_load") or mn in ("s_memtime","s_memrealtime") or mn.startswith("s_atomic"):
            self.kind="smem"; self.wr=R(0); self.rd=set().union(*[R(i) for i in range(1,len(ops))]) if len(ops)>1 else set()
        elif mn.startswith("s_"):
            self.kind="salu"
            if mn.startswith("s_cmp") or mn.startswith("s_bitcmp"):
                self.rd=R(0)|R(1)
            else:
                self.wr=R(0); self.rd=set().union(*[R(i) for i in range(1,len(ops))]) if len(ops)>1 else set()
                if mn.startswith("s_bitset"): self.rd|=R(0)
                if "saveexec" in mn: self.wr|={"exec"}; self.rd|={"exec"}
        else:
            raise ValueError("unknown instr: "+text)

def is_valu(i): return i.kind in ("valu","trans")
def vregs(s): return {r for r in s if r[0] in "va" and r!="vcc"}
def sregs(s): return {r for r in s if (r[0]=="s") or r=="vcc"}

def need(p, c):
    n=0
    if is_valu(p):
        pw=vregs(p.wr); sw=sregs(p.wr)
        if c.kind=="mfma":
            if pw & c.rd: n=max(n,2)
            if "exec" in p.wr: n=max(n,4)
        if is_valu(c):
            if c.dpp and (pw & c.rd): n=max(n,2)
            if c.dpp and "exec" in p.wr: n=max(n,5)
            if c.mn.startswith("v_permlane") and (pw & c.rd): n=max(n,2)
            if c.mn.startswith("v_readlane") or c.mn.startswith("v_readfirstlane"):
                if pw & c.rd: n=max(n,1)
                if "exec" in p.wr: n=max(n,4)
            if sw & c.rd: n=max(n,2)
            if sw & c.lanesel: n=max(n,4)
            if p.kind=="trans" and c.kind!="trans" and (pw & c.rd): n=max(n,1)
            if p.sdwa_dst and (pw & (c.rd|c.wr)): n=max(n,1)
        if c.kind=="vmem" and (sw & c.rd): n=max(n,5)
        if c.kind=="branch" and ("vccz" in c.mn or "vccnz" in c.mn) and "vcc" in p.wr: n=max(n,1)
    if p.kind=="mfma":
        idx={2:0,4:1,8:2,16:3}[p.passes]
        if c.kind=="mfma":
            if p.wr & c.C:
                if p.wr==c.C and p.mn==c.mn: n=max(n,(2,0,0,0)[idx])
                else: n=max(n,(4,6,10,18)[idx])
            if p.wr & (c.A|c.B): n=max(n,(5,8,12,20)[idx])
            if (p.wr & c.wr) and not (p.wr & c.C): n=max(n,(4,6,10,18)[idx]) if p.passes>c.passes else n
        elif is_valu(c):
            if p.wr & (c.rd|c.wr): n=max(n,(5,8,12,20)[idx])
            if p.C & c.wr: n=max(n,(1,3,7,15)[idx])
        elif c.kind in ("vmem","ds"):
            if p.wr & (c.rd|c.wr): n=max(n,(5,8,12,20)[idx])
    if p.kind=="salu" and "m0" in p.wr and c.lds_dma: n=max(n,1)
    if p.kind=="vmem" and p.wide_data:
        if is_valu(c) and (p.wide_data & c.wr): n=max(n,2)
        elif (p.wide_data & c.wr): n=max(n,1)
    return n

MAXW=20
def hazard_pass(lines, verbose=False):
    ins=[Ins(l) for l in lines]
    out=[]
    nins=0
    for c in ins:
        if c.states>0 and c.kind!="nop":
            dist=0; req=0
            for p in reversed(out):
                if p.kind=="branch" and p.mn=="s_branch": break
                if p.mn=="s_endpgm": break
                if p.states>0:
                    n=need(p,c)
                    if n>dist: req=max(req,n-dist)
                    dist+=p.states
                    if dist>=MAXW: break
            while req>0:
                k=min(req,16)
                out.append(Ins("  s_nop %d"%(k-1))); req-=k; nins+=1
        out.append(c)
    labels={i.label:k for k,i in enumerate(out) if i.kind=="label"}
    probs=[]
    for k,b in enumerate(out):
        if b.kind=="branch" and not b.target.startswith(("p_","hr_","hs_")):
            t=labels[b.target]
            d2=0
            for c in out[t:]:
                if c.states==0: continue
                dist=d2+1
                for p in reversed(out[:k]):
                    if p.kind=="branch" and p.mn=="s_branch": break
                    if p.states>0:
                        n=need(p,c)
                        if n>dist: probs.append((p.text,c.text,n,dist))
                        dist+=p.states
                        if dist>=MAXW: break
                d2+=c.states
                if d2>=MAXW or (c.kind=="branch" and c.mn=="s_branch") or c.mn=="s_endpgm": break
    if probs:
        for p in probs: print("HAZARD across branch:",p)
        raise SystemExit("hazards across branches")
    return [i.text for i in out], nins

import os
DEBUG=bool(os.environ.get('KDEBUG'))
TSB=72
class Kern:
    def __init__(self, name, grid, block, lds=0):
        self.name=name; self.grid=grid; self.block=block; self.lds=lds; self.L=[]; self.nv=None; self.na=0; self.ns=96
        self._lab=0
    def __call__(self, s):
        for l in s.split("\n"):
            l=l.strip()
            if l: self.L.append(("" if l.endswith(":") else "  ")+l)
    def lab(self, base="L"):
        self._lab+=1
        return "%s_%s_%d"%(base,self.name.replace("_kernel",""),self._lab)
    def stamp(self, i, tag=None):
        if not DEBUG: return
        tag=tag or getattr(self,"sec",None)
        if i and tag and os.environ.get("SSET","b") not in tag: return
        if i==0:
            for j in range(2,14): self("s_mov_b32 s%d, 0"%(TSB+j))
            self("s_memrealtime s[%d:%d]"%(TSB+16,TSB+17))
        self("s_memtime s[%d:%d]"%(TSB+2*i,TSB+2*i+1))
        self("s_waitcnt lgkmcnt(0)")
    def stamp_end(self, kidx, wsbase=4, tidreg="v0"):
        if not DEBUG: return
        from layout import TS
        self("s_memtime s[%d:%d]"%(TSB+14,TSB+15))
        self("s_memrealtime s[%d:%d]"%(TSB+18,TSB+19))
        self("s_mov_b64 exec, -1")
        self("s_load_dwordx2 s[%d:%d], s[0:1], 80"%(TSB+20,TSB+21))
        self("s_waitcnt lgkmcnt(0)")
        self("s_add_u32 s%d, s%d, 0x%x"%(TSB+20,TSB+20,TS+kidx*1024*1024))
        self("s_addc_u32 s%d, s%d, 0"%(TSB+21,TSB+21))
        self("s_mov_b32 s%d, 0x100000"%(TSB+22)); self("s_mov_b32 s%d, 0x20000"%(TSB+23))
        self("v_lshrrev_b32 v1, 6, %s"%tidreg)
        self("v_lshlrev_b32 v1, 6, v1")
        self("s_lshl_b32 s%d, s2, 10"%(TSB+24))
        self("v_add_u32 v1, s%d, v1"%(TSB+24))
        self("s_mov_b64 exec, 1")
        for i in range(10):
            self("v_mov_b32 v2, s%d"%(TSB+2*i))
            self("buffer_store_dword v2, v1, s[%d:%d], 0 offen offset:%d"%(TSB+20,TSB+23,4*i))
        for i,hw in enumerate(("HW_REG_XCC_ID","HW_REG_HW_ID")):
            self("s_getreg_b32 s%d, hwreg(%s)"%(TSB,hw))
            self("v_mov_b32 v2, s%d"%TSB)
            self("buffer_store_dword v2, v1, s[%d:%d], 0 offen offset:%d"%(TSB+20,TSB+23,40+4*i))
    def finish(self):
        lines,n=hazard_pass(self.L)
        mv=-1; ma=-1; ms=-1
        for l in lines:
            i=Ins(l)
            for r in i.wr|i.rd:
                if r in("vcc","exec","m0"): continue
                k=int(r[1:])
                if r[0]=="v": mv=max(mv,k)
                elif r[0]=="a": ma=max(ma,k)
                elif r[0]=="s": ms=max(ms,k)
        nv=mv+1
        acc=max(4,(nv+3)//4*4)
        tot = acc+ma+1 if ma>=0 else nv
        if self.nv: tot=max(tot,self.nv)
        self.info="%s: vgpr %d agpr %d total %d sgpr %d nops %d instrs %d"%(self.name,nv,ma+1,tot,ms+1,n,len(lines))
        txt=".text\n.globl %s\n.p2align 8\n.type %s,@function\n%s:\n"%(self.name,self.name,self.name)+"\n".join(lines)+"\n"
        desc=""".section .rodata,"a"
.p2align 6
.amdhsa_kernel %s
  .amdhsa_next_free_vgpr %d
  .amdhsa_next_free_sgpr %d
  .amdhsa_accum_offset %d
  .amdhsa_group_segment_fixed_size 0
  .amdhsa_kernarg_size 88
  .amdhsa_user_sgpr_count 2
  .amdhsa_user_sgpr_kernarg_segment_ptr 1
  .amdhsa_system_sgpr_workgroup_id_x 1
.end_amdhsa_kernel
"""%(self.name,tot,max(ms+1,16),min(acc,256))
        return txt,desc

def build_file(kerns, launches, header=""):
    s=header
    for k in launches:
        s+="; @launch kernel=%s grid=(%d,1,1) block=(%d,1,1) lds=%d\n"%(k.name,k.grid,k.block,k.lds)
    s+='.amdgcn_target "amdgcn-amd-amdhsa--gfx950"\n'
    descs=""
    for k in kerns:
        t,d=k.finish(); print(k.info)
        s+=t; descs+=d
    return s+descs
```
